```python
import torch

def _softmax(x, axis=-1):
    return torch.softmax(x, dim=axis)
def _gelu(x):
    return torch.nn.functional.gelu(x, approximate="tanh")
def _silu(x):
    return torch.nn.functional.silu(x)
def _sigmoid(x):
    return torch.sigmoid(x)
def _layernorm(x, axis=-1, eps=1e-5):
    m = x.mean(dim=axis, keepdim=True)
    v = x.var(dim=axis, keepdim=True, unbiased=False)
    return (x - m) / torch.sqrt(v + eps)
def _scatter_add(tgt, idx, src, axis=0):
    return tgt.clone().index_add_(axis, idx, src)
def _segment_sum(src, seg, n):
    out = torch.zeros((n,) + src.shape[1:], dtype=src.dtype)
    return out.index_add_(0, seg, src)
def _pad(x, pw):
    flat = tuple(v for pair in reversed(pw) for v in pair)
    return torch.nn.functional.pad(x, flat)

kernel_name = 'standalone__glu_gated_swiglu__sampling'

def setup_inputs():

    _w = (lambda a: (lambda t: t.to(torch.bfloat16) if t.is_floating_point() else t)(torch.as_tensor(a)))
    B, S, D, F = 32, 32, 512, 1792
    return {
        "x": _w((lambda *s: torch.randn(*s, dtype=torch.bfloat16) * 0.05)(B, S, D)),
        "w1": _w((lambda *s: torch.randn(*s, dtype=torch.bfloat16) * 0.05)(D, F) * (2.0 / D) ** 0.5),
        "w3": _w((lambda *s: torch.randn(*s, dtype=torch.bfloat16) * 0.05)(D, F) * (2.0 / D) ** 0.5),
        "w2": _w((lambda *s: torch.randn(*s, dtype=torch.bfloat16) * 0.05)(F, D) * (2.0 / F) ** 0.5),
    }

def reference(x, w1, w3, w2):
    gate = torch.einsum("bsd,df->bsf", x, w1)
    up = torch.einsum("bsd,df->bsf", x, w3)
    h = _silu(gate) * up
    out = torch.einsum("bsf,fd->bsd", h, w2)
    return out
```

```python
class Asm:
    def __init__(self):
        self.lines = []
        self.uid = 0
    def __call__(self, s=""):
        for l in s.split("\n"):
            self.lines.append("    " + l.strip() if l.strip() and not l.strip().endswith(":") else l.strip())
    def raw(self, s):
        self.lines.append(s)
    def label(self, name):
        self.lines.append(name + ":")
    def newlabel(self, base="L"):
        self.uid += 1
        return f"{base}_{self.uid}"
    def text(self):
        return "\n".join(self.lines) + "\n"

def v(i, n=1):
    return f"v{i}" if n == 1 else f"v[{i}:{i+n-1}]"
def a(i, n=1):
    return f"a{i}" if n == 1 else f"a[{i}:{i+n-1}]"
def s(i, n=1):
    return f"s{i}" if n == 1 else f"s[{i}:{i+n-1}]"

HEADER_COMMENT = """; Kernarg layout for this problem (56 bytes, ptrs only, base s[0:1]):
"""

def kernel_desc(name, vgpr, sgpr, accum):
    return f""".p2align 6
.amdhsa_kernel {name}
  .amdhsa_next_free_vgpr {vgpr}
  .amdhsa_next_free_sgpr {sgpr}
  .amdhsa_accum_offset {accum}
  .amdhsa_group_segment_fixed_size 0
  .amdhsa_kernarg_size 56
  .amdhsa_user_sgpr_count 2
  .amdhsa_user_sgpr_kernarg_segment_ptr 1
  .amdhsa_system_sgpr_workgroup_id_x 1
.end_amdhsa_kernel
"""

def kernel_head(name):
    return f""".globl {name}
.p2align 8
.type {name},@function
{name}:
"""
```

```python
import sys
from asmlib import *

H_BYTES = 32*112*1024
W2P_OFF = 4*1024*1024
W2P_BYTES = 8*112*2048

def gen_kernel_a(A):
    name = "gateup_kernel"
    A.raw(kernel_head(name))
    A("""
    s_cmp_ge_u32 s2, 256
    s_cbranch_scc1 A_done
    s_load_dwordx8 s[4:11], s[0:1], 0
    s_load_dwordx2 s[16:17], s[0:1], 48
    v_lshrrev_b32 v9, 6, v0
    v_and_b32 v10, 63, v0
    s_nop 0
    v_readfirstlane_b32 s32, v9
    s_cmp_ge_u32 s2, 224
    s_cbranch_scc1 A_repack
    """)
    A("""
    s_and_b32 s35, s2, 7
    s_lshr_b32 s36, s2, 3
    s_and_b32 s33, s35, 1
    s_lshl_b32 s33, s33, 2
    s_and_b32 s37, s36, 3
    s_add_u32 s33, s33, s37
    s_lshr_b32 s34, s35, 1
    s_mul_i32 s34, s34, 7
    s_lshr_b32 s37, s36, 2
    s_add_u32 s34, s34, s37
    """)
    A("""
    v_lshrrev_b32 v11, 3, v10
    v_and_b32 v12, 7, v10
    v_lshrrev_b32 v13, 4, v10
    s_and_b32 s37, s32, 1
    s_lshl_b32 s38, s37, 2
    v_add_u32 v14, s38, v13
    v_xor_b32 v14, v14, v12
    v_lshlrev_b32 v14, 4, v14
    v_lshl_add_u32 v1, v11, 10, v14
    s_lshl_b32 s38, s32, 13
    v_add_u32 v1, s38, v1
    """)
    A("""
    v_and_b32 v14, 1, v13
    v_lshlrev_b32 v14, 2, v14
    v_xor_b32 v14, v14, v12
    v_lshlrev_b32 v14, 4, v14
    s_movk_i32 s38, 3584
    v_mul_lo_u32 v2, v11, s38
    v_add_u32 v2, v2, v14
    s_mul_i32 s38, s37, 114688
    v_add_u32 v2, s38, v2
    """)
    A("""
    v_and_b32 v11, 31, v10
    v_lshrrev_b32 v12, 5, v10
    v_bfe_u32 v13, v10, 1, 3
    v_xor_b32 v13, v13, v12
    v_lshlrev_b32 v13, 4, v13
    v_lshl_add_u32 v3, v11, 7, v13
    s_lshr_b32 s39, s32, 1
    s_lshl_b32 s38, s39, 13
    v_add_u32 v3, s38, v3
    v_xor_b32 v4, 32, v3
    v_xor_b32 v5, 64, v3
    v_xor_b32 v6, 96, v3
    """)
    A("""
    v_bfe_u32 v11, v10, 2, 2
    v_lshl_add_u32 v13, v12, 3, v11
    v_lshlrev_b32 v7, 7, v13
    v_lshrrev_b32 v13, 1, v11
    v_xor_b32 v13, s37, v13
    v_lshl_add_u32 v7, v13, 6, v7
    v_bfe_u32 v13, v10, 4, 1
    v_lshl_add_u32 v7, v13, 5, v7
    v_and_b32 v13, 3, v10
    v_lshl_add_u32 v7, v13, 3, v7
    v_add_u32 v7, 0x4000, v7
    """)
    for i in range(5):
        A(f"v_add_u32 v{48+i}, 0x10000, v{3+i}")
        A(f"v_add_u32 v{53+i}, 0x20000, v{3+i}")
    A("v_lshlrev_b32 v8, 4, v10")
    for i in range(64):
        A(f"v_mov_b32 v{64+i}, 0")
    A("""
    s_lshl_b32 s40, s32, 10
    s_lshl_b32 s41, s32, 12
    s_add_u32 s41, s41, 0x4000
    s_waitcnt lgkmcnt(0)
    """)
    A("""
    s_lshl_b32 s38, s33, 17
    s_add_u32 s20, s4, s38
    s_addc_u32 s21, s5, 0
    s_mov_b32 s22, 0x20000
    s_mov_b32 s23, 0x20000
    s_cmp_lt_u32 s32, 2
    s_cselect_b32 s24, s6, s8
    s_cselect_b32 s25, s7, s9
    s_lshl_b32 s38, s34, 7
    s_add_u32 s24, s24, s38
    s_addc_u32 s25, s25, 0
    s_sub_u32 s26, 1835008, s38
    s_mov_b32 s27, 0x20000
    s_mov_b32 s28, s16
    s_mov_b32 s29, s17
    """)
    A(f"s_mov_b32 s30, {H_BYTES}")
    A("s_mov_b32 s31, 0x20000")

    def dma(c):
        slot = c % 5
        for i in range(4):
            A(f"s_add_u32 m0, s40, {slot*32768 + i*4096}")
            A(f"s_mov_b32 s42, {i*32768 + c*128}")
            A(f"buffer_load_dwordx4 v1, s[20:23], s42 offen lds")
        for i in range(4):
            A(f"s_add_u32 m0, s41, {slot*32768 + i*1024}")
            A(f"s_mov_b32 s42, {c*229376 + i*28672}")
            A(f"buffer_load_dwordx4 v2, s[24:27], s42 offen lds")

    def reads(c, ks, st):
        slot = c % 5
        base = [3,3,48,48,53][slot]
        so = (slot % 2) * 32768 if slot < 4 else 0
        r = 16 + st*16
        A(f"ds_read_b128 {v(r,4)}, v{base+ks} offset:{so}")
        A(f"ds_read_b64_tr_b16 {v(r+8,2)}, v{base+4} offset:{so + ks*2048}")
        A(f"ds_read_b64_tr_b16 {v(r+10,2)}, v{base+4} offset:{so + ks*2048 + 512}")
        A(f"ds_read_b128 {v(r+4,4)}, v{base+ks} offset:{so+4096}")
        A(f"ds_read_b64_tr_b16 {v(r+12,2)}, v{base+4} offset:{so + 8192 + ks*2048}")
        A(f"ds_read_b64_tr_b16 {v(r+14,2)}, v{base+4} offset:{so + 8192 + ks*2048 + 512}")

    def mfmas(st):
        r = 16 + st*16
        for gu in range(2):
            for mb in range(2):
                acc = 64 + (mb*2+gu)*16
                A(f"v_mfma_f32_32x32x16_bf16 {v(acc,16)}, {v(r+8+gu*4,4)}, {v(r+mb*4,4)}, {v(acc,16)}")

    for c in range(5):
        dma(c)
    A("s_waitcnt vmcnt(32)")
    A("s_barrier")
    reads(0, 0, 0)
    reads(0, 1, 1)
    issued = 5
    for c in range(8):
        A("s_waitcnt lgkmcnt(6)")
        mfmas(0)
        reads(c, 2, 0)
        A("s_waitcnt lgkmcnt(6)")
        mfmas(1)
        reads(c, 3, 1)
        if c < 7:
            n = (issued - (c+2)) * 8
            A(f"s_waitcnt vmcnt({n}) lgkmcnt(0)")
            A("s_barrier")
            if issued < 8:
                dma(issued)
                issued += 1
            mfmas(0)
            reads(c+1, 0, 0)
            mfmas(1)
            reads(c+1, 1, 1)
        else:
            A("s_waitcnt lgkmcnt(6)")
            mfmas(0)
            A("s_waitcnt lgkmcnt(0)")
            mfmas(1)
    A("s_nop 7")
    A("s_nop 7")
    A("""
    s_lshl_b32 s38, s33, 2
    s_lshl_b32 s42, s39, 1
    s_add_u32 s38, s38, s42
    s_mul_i32 s38, s38, 112
    s_lshl_b32 s42, s34, 2
    s_add_u32 s38, s38, s42
    s_lshl_b32 s42, s37, 1
    s_add_u32 s38, s38, s42
    s_lshl_b32 s38, s38, 10
    s_add_u32 s43, s38, 114688
    s_mov_b32 s44, 0xbfb8aa3b
    """)
    for mb in range(2):
        g0 = 64 + (mb*2)*16
        u0 = g0 + 16
        t0 = 128 + mb*32
        for r in range(16):
            A(f"v_mul_f32 v{t0+r}, s44, v{g0+r}")
        for r in range(16):
            A(f"v_exp_f32 v{t0+r}, v{t0+r}")
        for r in range(16):
            A(f"v_mul_f32 v{g0+r}, v{g0+r}, v{u0+r}")
        for r in range(16):
            A(f"v_add_f32 v{t0+r}, 1.0, v{t0+r}")
        for r in range(16):
            A(f"v_rcp_f32 v{t0+r}, v{t0+r}")
        A("s_nop 0")
        for r in range(16):
            A(f"v_mul_f32 v{g0+r}, v{g0+r}, v{t0+r}")
        for d in range(8):
            A(f"v_cvt_pk_bf16_f32 v{t0+16+d}, v{g0+2*d}, v{g0+2*d+1}")
        so = "s38" if mb == 0 else "s43"
        A(f"buffer_store_dwordx4 {v(t0+16,4)}, v8, s[28:31], {so} offen")
        A(f"buffer_store_dwordx4 {v(t0+20,4)}, v8, s[28:31], {so} offen offset:1024")
    A("s_endpgm")

    A.label("A_repack")
    A("""
    s_sub_u32 s33, s2, 224
    s_lshl_b32 s33, s33, 2
    s_add_u32 s33, s33, s32
    s_mul_i32 s33, s33, 7
    v_and_b32 v11, 31, v10
    v_lshrrev_b32 v12, 5, v10
    v_lshlrev_b32 v1, 12, v12
    v_lshl_add_u32 v1, v11, 2, v1
    v_add_u32 v2, 0x2000, v1
    v_lshlrev_b32 v8, 4, v10
    s_mov_b32 s44, 0x05040100
    s_mov_b32 s45, 0x07060302
    s_waitcnt lgkmcnt(0)
    s_mov_b32 s20, s10
    s_mov_b32 s21, s11
    s_mov_b32 s22, 1835008
    s_mov_b32 s23, 0x20000
    """)
    A(f"s_add_u32 s28, s16, {W2P_OFF}")
    A("s_addc_u32 s29, s17, 0")
    A(f"s_mov_b32 s30, {W2P_BYTES}")
    A("s_mov_b32 s31, 0x20000")
    for t in range(7):
        A(f"s_add_u32 s34, s33, {t}")
        A("s_lshr_b32 s35, s34, 3")
        A("s_and_b32 s36, s34, 7")
        A("s_lshl_b32 s37, s35, 14")
        A("s_lshl_b32 s38, s36, 7")
        A("s_add_u32 s37, s37, s38")
        A("s_mul_i32 s38, s36, 112")
        A("s_add_u32 s38, s38, s35")
        A(f"s_lshl_b32 s{50+t}, s38, 11")
        for j in range(8):
            vo = "v1" if j < 4 else "v2"
            A(f"buffer_load_dword v{16+t*8+j}, {vo}, s[20:23], s37 offen offset:{(j%4)*1024}")
    for t in range(7):
        A(f"s_waitcnt vmcnt({min(63,(6-t)*8 + 2*t)})") if False else None
    A("s_waitcnt vmcnt(0)")
    for t in range(7):
        r = 16 + t*8
        o = 80 + t*8
        for d in range(4):
            A(f"v_perm_b32 v{o+d}, v{r+2*d+1}, v{r+2*d}, s44")
            A(f"v_perm_b32 v{o+4+d}, v{r+2*d+1}, v{r+2*d}, s45")
        A(f"buffer_store_dwordx4 {v(o,4)}, v8, s[28:31], s{50+t} offen")
        A(f"buffer_store_dwordx4 {v(o+4,4)}, v8, s[28:31], s{50+t} offen offset:1024")
    A.label("A_done")
    A("s_endpgm")
    return name

def gen_kernel_b(A):
    name = "down_kernel"
    A.raw(kernel_head(name))
    A("""
    s_cmp_ge_u32 s2, 256
    s_cbranch_scc1 B_done
    s_load_dwordx2 s[12:13], s[0:1], 32
    s_load_dwordx2 s[16:17], s[0:1], 48
    v_lshrrev_b32 v9, 6, v0
    v_and_b32 v10, 63, v0
    v_lshlrev_b32 v1, 4, v10
    v_readfirstlane_b32 s32, v9
    s_and_b32 s35, s2, 7
    s_lshr_b32 s36, s2, 3
    s_and_b32 s33, s35, 3
    s_lshl_b32 s33, s33, 3
    s_and_b32 s37, s36, 7
    s_add_u32 s33, s33, s37
    s_lshr_b32 s34, s35, 2
    s_lshl_b32 s34, s34, 2
    s_lshr_b32 s37, s36, 3
    s_add_u32 s34, s34, s37
    """)
    A("""
    s_mul_i32 s38, s32, 28
    s_mul_i32 s39, s33, 112
    s_add_u32 s39, s39, s38
    s_lshl_b32 s39, s39, 10
    s_mul_i32 s40, s34, 112
    s_add_u32 s40, s40, s38
    s_lshl_b32 s40, s40, 11
    """)
    A(f"s_add_u32 s40, s40, {W2P_OFF}")
    for i in range(32):
        A(f"v_accvgpr_write_b32 a{i}, 0")
    A("""
    s_waitcnt lgkmcnt(0)
    s_add_u32 s20, s16, s39
    s_addc_u32 s21, s17, 0
    s_mov_b32 s22, 28672
    s_mov_b32 s23, 0x20000
    s_add_u32 s24, s16, s40
    s_addc_u32 s25, s17, 0
    s_mov_b32 s26, 57344
    s_mov_b32 s27, 0x20000
    """)
    D = 20
    def loads(t):
        r = 16 + (t % D)*12
        ho = t*1024
        A(f"s_mov_b32 s42, {ho & ~4095}")
        A(f"buffer_load_dwordx4 {v(r,4)}, v1, s[20:23], s42 offen offset:{ho & 4095}")
        wo = t*2048
        A(f"s_mov_b32 s43, {wo & ~4095}")
        A(f"buffer_load_dwordx4 {v(r+4,4)}, v1, s[24:27], s43 offen offset:{wo & 4095}")
        A(f"buffer_load_dwordx4 {v(r+8,4)}, v1, s[24:27], s43 offen offset:{(wo & 4095)+1024}")
    for t in range(D):
        loads(t)
    for t in range(28):
        n = 3*(min(28, D+t) - t - 1)
        A(f"s_waitcnt vmcnt({n})")
        r = 16 + (t % D)*12
        A(f"v_mfma_f32_32x32x16_bf16 a[0:15], {v(r+4,4)}, {v(r,4)}, a[0:15]")
        A(f"v_mfma_f32_32x32x16_bf16 a[16:31], {v(r+8,4)}, {v(r,4)}, a[16:31]")
        if t + D < 28:
            loads(t + D)
    A("s_nop 7")
    A("s_nop 7")
    A("s_lshl_b32 s38, s32, 13")
    A("v_add_u32 v2, s38, v1")
    for q in range(4):
        for par in range(2):
            A(f"ds_write_b128 v2, {a(par*16+4*q,4)} offset:{q*2048+par*1024}")
    A("s_lshl_b32 s38, s32, 11")
    A("v_add_u32 v3, s38, v1")
    A("s_waitcnt lgkmcnt(0)")
    A("s_barrier")
    for w in range(4):
        for par in range(2):
            A(f"ds_read_b128 {v(16+(w*2+par)*4,4)}, v3 offset:{w*8192+par*1024}")
    A("""
    v_and_b32 v11, 31, v10
    v_lshrrev_b32 v12, 5, v10
    v_lshlrev_b32 v4, 10, v11
    v_lshl_add_u32 v4, v12, 4, v4
    s_lshl_b32 s38, s33, 15
    s_lshl_b32 s39, s34, 7
    s_add_u32 s38, s38, s39
    s_lshl_b32 s39, s32, 5
    s_add_u32 s38, s38, s39
    s_mov_b32 s20, s12
    s_mov_b32 s21, s13
    s_mov_b32 s22, 0x100000
    s_mov_b32 s23, 0x20000
    s_waitcnt lgkmcnt(0)
    """)
    for i in range(8):
        A(f"v_add_f32 v{16+i}, v{16+i}, v{24+i}")
        A(f"v_add_f32 v{32+i}, v{32+i}, v{40+i}")
    for i in range(8):
        A(f"v_add_f32 v{16+i}, v{16+i}, v{32+i}")
    for d in range(4):
        A(f"v_cvt_pk_bf16_f32 v{48+d}, v{16+d}, v{20+d}")
    A("buffer_store_dwordx4 v[48:51], v4, s[20:23], s38 offen")
    A.label("B_done")
    A("s_endpgm")
    return name

def main(out):
    A = Asm()
    A.raw(HEADER_COMMENT.rstrip())
    A.raw("; @launch kernel=gateup_kernel grid=(256,1,1) block=(256,1,1) lds=163840")
    A.raw("; @launch kernel=down_kernel grid=(256,1,1) block=(256,1,1) lds=32768")
    A.raw('.amdgcn_target "amdgcn-amd-amdhsa--gfx950"')
    A.raw(".text")
    ka = gen_kernel_a(A)
    kb = gen_kernel_b(A)
    A.raw('.section .rodata,"a"')
    A.raw(kernel_desc(ka, 192, 64, 192))
    A.raw(kernel_desc(kb, 288, 64, 256))
    open(out, "w").write(A.text())

main(sys.argv[1])
```

```python
import sys, os
from asmlib import *

STAMP = int(os.environ.get("STAMP", "0"))
LA    = int(os.environ.get("LA", "6"))
ROT   = os.environ.get("ROT", "1")
HELP  = int(os.environ.get("HELP", "1"))
HROT  = int(os.environ.get("HROT", "0"))
SPIN  = 40000

H_BYTES  = 32*112*1024
FLAG_OFF = 4*1024*1024
FLAG_BYTES = 16*28*128
K = "standalone__glu_gated_swiglu__sampling_kernel"

NST = 12
def stamp(A, i, real=False):
    if not STAMP: return
    A(f"{'s_memrealtime' if real else 's_memtime'} s[{70+2*i}:{71+2*i}]")
def stamp_out(A):
    if not STAMP: return
    A("s_waitcnt vmcnt(0)")
    stamp(A, NST-2)
    stamp(A, NST-1, True)
    A("s_waitcnt lgkmcnt(0)")
    A("s_lshl_b32 s95, s2, 10")
    A("s_lshl_b32 s94, s32, 7")
    A("s_add_u32 s95, s95, s94")
    A("s_add_u32 s95, s95, 0x8000000")
    A("s_add_u32 s96, s16, s95")
    A("s_addc_u32 s97, s17, 0")
    A("s_mov_b32 s98, 128")
    A("s_mov_b32 s99, 0x20000")
    for i in range(2*NST):
        A(f"v_writelane_b32 v15, s{70+i}, {i}")
    A("v_and_b32 v14, 63, v0")
    A("v_lshlrev_b32 v14, 2, v14")
    A(f"s_mov_b64 exec, {hex((1<<(2*NST))-1)}")
    A("buffer_store_dword v15, v14, s[96:99], 0 offen")

W2F = 64
HF  = 176
AC2 = 32

def slot_of_step(i): return i % 5
P_SLOT = {0:3, 1:4, 2:0, 3:1, 4:3, 5:4, 6:0}

def gen():
    A = Asm()
    A.raw(kernel_head(K))
    A("""
    s_cmp_ge_u32 s2, 256
    s_cbranch_scc1 L_done
    """)
    stamp(A,0,True); stamp(A,1)
    A("""
    s_load_dwordx8 s[4:11], s[0:1], 0
    s_load_dwordx4 s[12:15], s[0:1], 32
    s_load_dwordx2 s[16:17], s[0:1], 48
    v_lshrrev_b32 v9, 6, v0
    v_and_b32 v10, 63, v0
    s_and_b32 s35, s2, 7
    v_readfirstlane_b32 s32, v9
    s_lshr_b32 s36, s2, 3
    s_and_b32 s33, s35, 1
    s_lshl_b32 s33, s33, 2
    s_and_b32 s37, s36, 3
    s_add_u32 s33, s33, s37
    s_lshr_b32 s34, s35, 1
    s_mul_i32 s34, s34, 7
    s_lshr_b32 s38, s36, 2
    s_add_u32 s34, s34, s38
    s_and_b32 s44, s35, 3
    s_lshl_b32 s44, s44, 3
    s_add_u32 s44, s44, s38
    s_lshr_b32 s45, s35, 2
    s_lshl_b32 s45, s45, 2
    s_add_u32 s45, s45, s37
    s_and_b32 s46, s32, 3
    """)
    A("""
    v_lshrrev_b32 v12, 5, v10
    v_bfe_u32 v11, v10, 2, 2
    v_lshl_add_u32 v13, v12, 2, v11
    v_lshlrev_b32 v20, 7, v13
    v_lshrrev_b32 v13, 1, v11
    v_lshl_add_u32 v20, v13, 6, v20
    v_bfe_u32 v13, v10, 4, 1
    v_lshl_add_u32 v20, v13, 5, v20
    v_and_b32 v13, 3, v10
    v_lshl_add_u32 v20, v13, 3, v20
    s_lshl_b32 s47, s46, 13
    v_add_u32 v240, s47, v20
    v_xor_b32 v241, 64, v240
    v_add_u32 v242, 0x10000, v240
    v_add_u32 v243, 0x10000, v241
    v_add_u32 v244, 0x20000, v240
    v_add_u32 v245, 0x20000, v241
    v_lshlrev_b32 v8, 4, v10
    """)
    A("s_cmp_ge_u32 s32, 4")
    A("s_cbranch_scc1 L_loader")

    A("""
    s_and_b32 s40, s32, 1
    s_lshr_b32 s39, s32, 1
    v_and_b32 v11, 31, v10
    v_bfe_u32 v13, v10, 1, 3
    v_xor_b32 v13, v13, v12
    v_lshlrev_b32 v13, 4, v13
    v_lshl_add_u32 v3, v11, 7, v13
    s_lshl_b32 s41, s39, 13
    v_add_u32 v3, s41, v3
    v_xor_b32 v4, 32, v3
    v_xor_b32 v5, 64, v3
    v_xor_b32 v6, 96, v3
    v_bfe_u32 v11, v10, 2, 2
    v_lshl_add_u32 v13, v12, 3, v11
    v_lshlrev_b32 v7, 7, v13
    v_lshrrev_b32 v13, 1, v11
    v_xor_b32 v13, s40, v13
    v_lshl_add_u32 v7, v13, 6, v7
    v_bfe_u32 v13, v10, 4, 1
    v_lshl_add_u32 v7, v13, 5, v7
    v_and_b32 v13, 3, v10
    v_lshl_add_u32 v7, v13, 3, v7
    v_add_u32 v7, 0x4000, v7
    """)
    for i in range(5):
        A(f"v_add_u32 v{48+i}, 0x10000, v{3+i}")
        A(f"v_add_u32 v{53+i}, 0x20000, v{3+i}")
    A("s_waitcnt lgkmcnt(0)")
    A("""
    s_mov_b32 s24, s14
    s_mov_b32 s25, s15
    s_mov_b32 s26, 256
    s_mov_b32 s27, 0x20000
    s_mov_b32 s28, s16
    s_mov_b32 s29, s17
    """)
    A(f"s_mov_b32 s30, {FLAG_OFF + FLAG_BYTES}")
    A("s_mov_b32 s31, 0x20000")
    A("s_cmp_ge_u32 s36, 28")
    A("s_cbranch_scc1 L_c_phase2")
    A("""
    s_or_b32 s41, s2, s32
    s_cmp_lg_u32 s41, 0
    s_cbranch_scc1 L_c_nonce_done
    s_memrealtime s[42:43]
    s_waitcnt lgkmcnt(0)
    s_or_b32 s42, s42, 1
    v_mov_b32 v16, s42
    v_mov_b32 v17, s43
    v_mov_b32 v18, 0
    s_mov_b64 exec, 1
    buffer_store_dwordx2 v[16:17], v18, s[24:27], 0 offen sc1
    s_mov_b64 exec, -1
    """)
    A.label("L_c_nonce_done")

    def reads(i, ks, st):
        slot = slot_of_step(i)
        base = [3,3,48,48,53][slot]
        so = (slot % 2) * 32768 if slot < 4 else 0
        r = 16 + st*16
        A(f"ds_read_b128 {v(r,4)}, v{base+ks} offset:{so}")
        A(f"ds_read_b64_tr_b16 {v(r+8,2)}, v{base+4} offset:{so + ks*2048}")
        A(f"ds_read_b64_tr_b16 {v(r+10,2)}, v{base+4} offset:{so + ks*2048 + 512}")
        A(f"ds_read_b128 {v(r+4,4)}, v{base+ks} offset:{so+4096}")
        A(f"ds_read_b64_tr_b16 {v(r+12,2)}, v{base+4} offset:{so + 8192 + ks*2048}")
        A(f"ds_read_b64_tr_b16 {v(r+14,2)}, v{base+4} offset:{so + 8192 + ks*2048 + 512}")
    def mfmas(st, first=False):
        r = 16 + st*16
        for gu in range(2):
            for mb in range(2):
                acc = 64 + (mb*2+gu)*16
                c = "0" if first else v(acc,16)
                A(f"v_mfma_f32_32x32x16_bf16 {v(acc,16)}, {v(r+8+gu*4,4)}, {v(r+mb*4,4)}, {c}")

    A("s_barrier")
    stamp(A,2)
    reads(0, 0, 0)
    reads(0, 1, 1)
    for i in range(8):
        A("s_waitcnt lgkmcnt(6)")
        mfmas(0, first=(i==0))
        reads(i, 2, 0)
        A("s_waitcnt lgkmcnt(6)")
        mfmas(1)
        reads(i, 3, 1)
        if i == 4:
            A("v_mov_b32 v232, 0")
            A("buffer_load_dwordx2 v[234:235], v232, s[24:27], 0 offen sc1")
        if i < 7:
            A("s_waitcnt lgkmcnt(0)")
            A("s_barrier")
            if i == 0: stamp(A,3)
            mfmas(0)
            reads(i+1, 0, 0)
            mfmas(1)
            reads(i+1, 1, 1)
        else:
            A("s_waitcnt lgkmcnt(6)")
            mfmas(0)
            A("s_waitcnt lgkmcnt(0)")
            mfmas(1)
    stamp(A,4)
    A("""
    s_lshl_b32 s41, s33, 2
    s_lshl_b32 s42, s39, 1
    s_add_u32 s41, s41, s42
    s_mul_i32 s41, s41, 112
    s_lshl_b32 s42, s34, 2
    s_add_u32 s41, s41, s42
    s_lshl_b32 s42, s40, 1
    s_add_u32 s41, s41, s42
    s_lshl_b32 s41, s41, 10
    s_add_u32 s43, s41, 114688
    s_mov_b32 s48, 0xbfb8aa3b
    s_lshl_b32 s49, s33, 1
    s_add_u32 s49, s49, s39
    s_mul_i32 s49, s49, 28
    s_add_u32 s49, s49, s34
    s_lshl_b32 s49, s49, 7
    s_lshl_b32 s42, s40, 3
    s_add_u32 s49, s49, s42
    """)
    A(f"s_add_u32 s49, s49, {FLAG_OFF}")
    A("s_nop 7")
    for mb in range(2):
        g0 = 64 + (mb*2)*16
        u0 = g0 + 16
        t0 = 128 + mb*32
        for r in range(16):
            A(f"v_mul_f32 v{t0+r}, s48, v{g0+r}")
        for r in range(16):
            A(f"v_exp_f32 v{t0+r}, v{t0+r}")
        for r in range(16):
            A(f"v_mul_f32 v{g0+r}, v{g0+r}, v{u0+r}")
        for r in range(16):
            A(f"v_add_f32 v{t0+r}, 1.0, v{t0+r}")
        for r in range(16):
            A(f"v_rcp_f32 v{t0+r}, v{t0+r}")
        A("s_nop 0")
        for r in range(16):
            A(f"v_mul_f32 v{g0+r}, v{g0+r}, v{t0+r}")
        for d in range(8):
            A(f"v_cvt_pk_bf16_f32 v{t0+16+d}, v{g0+2*d}, v{g0+2*d+1}")
        so = "s41" if mb == 0 else "s43"
        A(f"buffer_store_dwordx4 {v(t0+16,4)}, v8, s[28:31], {so} offen sc1")
        A(f"buffer_store_dwordx4 {v(t0+20,4)}, v8, s[28:31], {so} offen offset:1024 sc1")
    stamp(A,5)
    A(f"s_movk_i32 s50, {SPIN//2}")
    A("s_waitcnt vmcnt(4)")
    A.label("L_c_nchk")
    A("v_readfirstlane_b32 s42, v234")
    A("s_cmp_lg_u32 s42, 0")
    A("s_cbranch_scc1 L_c_nok")
    A("s_sub_u32 s50, s50, 1")
    A("s_cmp_eq_u32 s50, 0")
    A("s_cbranch_scc1 L_c_nok")
    A("buffer_load_dwordx2 v[234:235], v232, s[24:27], 0 offen sc1")
    A("s_waitcnt vmcnt(0)")
    A("s_branch L_c_nchk")
    A.label("L_c_nok")
    A("s_waitcnt vmcnt(0)")
    A("s_mov_b64 exec, 1")
    A("buffer_store_dwordx2 v[234:235], v232, s[28:31], s49 offen sc1")
    A("s_mov_b64 exec, -1")
    stamp(A,6)
    A.label("L_c_phase2")
    A("s_waitcnt lgkmcnt(0)")
    A("s_barrier")
    stamp(A,7)
    A("s_movk_i32 s52, 64")
    A("s_movk_i32 s53, 56")
    gen_poll_addr(A, True)
    issue_poll(A)
    for t in range(14):
        p = 4 + (t >> 2) if t < 12 else 3
        q = (t & 3) if t < 12 else 2 + (t - 12)
        w2_reads(A, t, p, q)
    A("s_branch L_phase2")

    A.label("L_loader")
    A("""
    v_lshrrev_b32 v11, 3, v10
    v_and_b32 v12, 7, v10
    v_lshrrev_b32 v13, 4, v10
    s_and_b32 s40, s46, 1
    s_lshl_b32 s41, s40, 2
    v_add_u32 v14, s41, v13
    v_xor_b32 v14, v14, v12
    v_lshlrev_b32 v14, 4, v14
    v_lshl_add_u32 v1, v11, 10, v14
    s_lshl_b32 s41, s46, 13
    v_add_u32 v1, s41, v1
    v_and_b32 v14, 1, v13
    v_lshlrev_b32 v14, 2, v14
    v_xor_b32 v14, v14, v12
    v_lshlrev_b32 v14, 4, v14
    s_movk_i32 s41, 3584
    v_mul_lo_u32 v2, v11, s41
    v_add_u32 v2, v2, v14
    s_mul_i32 s41, s40, 114688
    v_add_u32 v2, s41, v2
    v_lshl_add_u32 v3, v11, 10, v14
    s_lshl_b32 s41, s46, 15
    v_add_u32 v4, s41, v3
    s_lshl_b32 s41, s46, 16
    v_add_u32 v3, s41, v3
    s_lshl_b32 s54, s46, 10
    s_lshl_b32 s55, s46, 12
    s_add_u32 s55, s55, 0x4000
    s_lshl_b32 s56, s46, 13
    """)
    if ROT == "1":
        A("s_lshl_b32 s57, s37, 1")
        A("s_add_u32 s57, s57, s38")
        A("s_add_u32 s57, s57, s35")
    else:
        A("s_mov_b32 s57, 0")
    A("s_waitcnt lgkmcnt(0)")
    A("""
    s_lshl_b32 s41, s33, 17
    s_add_u32 s20, s4, s41
    s_addc_u32 s21, s5, 0
    s_mov_b32 s22, 0x20000
    s_mov_b32 s23, 0x20000
    s_cmp_lt_u32 s46, 2
    s_cselect_b32 s24, s6, s8
    s_cselect_b32 s25, s7, s9
    s_lshl_b32 s41, s34, 7
    s_add_u32 s24, s24, s41
    s_addc_u32 s25, s25, 0
    s_sub_u32 s26, 1835008, s41
    s_mov_b32 s27, 0x20000
    s_lshl_b32 s41, s45, 7
    s_add_u32 s28, s10, s41
    s_addc_u32 s29, s11, 0
    s_sub_u32 s30, 1835008, s41
    s_mov_b32 s31, 0x20000
    """)
    def dma_step(i, j):
        slot = slot_of_step(i)
        out = []
        if j == 0:
            out.append(f"s_add_u32 s58, s57, {i}")
            out.append("s_and_b32 s58, s58, 7")
            out.append("s_lshl_b32 s59, s58, 7")
            out.append("s_mul_i32 s60, s58, 229376")
        if j < 4:
            out.append(f"s_add_u32 m0, s54, {slot*32768 + j*4096}")
            out.append(f"s_add_u32 s42, s59, {j*32768}")
            out.append("buffer_load_dwordx4 v1, s[20:23], s42 offen lds")
        else:
            jj = j - 4
            out.append(f"s_add_u32 m0, s55, {slot*32768 + jj*1024}")
            out.append(f"s_add_u32 s42, s60, {jj*28672}")
            out.append("buffer_load_dwordx4 v2, s[24:27], s42 offen lds")
        return out
    def dma_piece(p, j):
        slot = P_SLOT[p]
        out = [f"s_add_u32 m0, s56, {slot*32768 + j*1024}"]
        if p != 3:
            out.append(f"s_mov_b32 s42, {(256*p + 8*j)*1024}")
            out.append("buffer_load_dwordx4 v3, s[28:31], s42 offen lds")
        else:
            row = 768 + 8*j if j < 4 else 896 + 8*(j-4)
            out.append(f"s_mov_b32 s42, {row*1024}")
            out.append("buffer_load_dwordx4 v4, s[28:31], s42 offen lds")
        return out
    A("s_cmp_ge_u32 s36, 28")
    A("s_cbranch_scc1 L_helper")
    flat = [(i, j) for i in range(8) for j in range(8)] + [(8, j) for j in range(8)] + [(9, j) for j in range(8)]
    issued = 0
    def issue_upto(n):
        nonlocal issued
        while issued < n:
            i, j = flat[issued]
            for l in (dma_step(i, j) if i < 8 else dma_piece(i-8, j)): A(l)
            issued += 1
    for i in range(8):
        issue_upto(8*(i+1) + LA)
        A(f"s_waitcnt vmcnt({LA})")
        A("s_barrier")
        if i == 0: stamp(A,2)
        if i == 1: stamp(A,3)
        if i == 7: stamp(A,4)
    issue_upto(len(flat))
    A("s_branch L_w2rest")
    A.label("L_helper")
    for p in range(2):
        for j in range(8):
            for l in dma_piece(p, j): A(l)
    A.label("L_w2rest")
    def piece(p):
        for j in range(8):
            for l in dma_piece(p, j): A(l)
    def drain(p):
        n = 4 if p < 3 else 2
        for q in range(n):
            t = 4*p + q
            w2_reads(A, t, p, q)
    piece(2)
    A("s_waitcnt vmcnt(16)"); drain(0)
    piece(3)
    A("s_waitcnt vmcnt(16)"); drain(1)
    A("s_waitcnt lgkmcnt(15)")
    A("s_waitcnt lgkmcnt(0)")
    piece(4)
    A("s_waitcnt vmcnt(16)"); drain(2)
    piece(5)
    A("s_waitcnt vmcnt(16)"); drain(3)
    A("s_waitcnt lgkmcnt(0)")
    piece(6)
    stamp(A,5)
    A("s_mov_b32 s52, 0")
    A("s_movk_i32 s53, 48")
    A("""
    s_mov_b32 s24, s14
    s_mov_b32 s25, s15
    s_mov_b32 s26, 256
    s_mov_b32 s27, 0x20000
    s_mov_b32 s28, s16
    s_mov_b32 s29, s17
    """)
    A(f"s_mov_b32 s30, {FLAG_OFF + FLAG_BYTES}")
    A("s_mov_b32 s31, 0x20000")
    gen_poll_addr(A, False)
    A("s_waitcnt vmcnt(0)")
    stamp(A,6)
    A("s_barrier")
    stamp(A,7)
    issue_poll(A)

    A.label("L_phase2")
    A("""
    s_mul_i32 s58, s44, 112
    s_lshl_b32 s59, s46, 2
    s_add_u32 s60, s58, s52
    s_add_u32 s60, s60, s59
    s_lshl_b32 s60, s60, 10
    s_lshl_b32 s59, s46, 1
    s_add_u32 s61, s58, s53
    s_add_u32 s61, s61, s59
    s_lshl_b32 s61, s61, 10
    s_add_u32 s62, s60, 16384
    s_add_u32 s63, s60, 32768
    """)
    A("""
    v_and_b32 v11, 31, v10
    v_lshrrev_b32 v12, 5, v10
    v_and_b32 v13, 3, v11
    v_bfe_u32 v14, v11, 2, 1
    v_mul_u32_u24 v14, 12, v14
    v_or_b32 v13, v13, v14
    v_xor_b32 v13, v13, v12
    v_lshlrev_b32 v13, 4, v13
    v_lshl_add_u32 v13, v11, 8, v13
    s_xor_b32 s58, s32, 4
    s_lshl_b32 s58, s58, 13
    s_add_u32 s58, s58, 0x10000
    v_add_u32 v246, s58, v13
    v_lshrrev_b32 v11, 4, v10
    s_lshl_b32 s58, s32, 2
    v_add_u32 v11, s58, v11
    v_and_b32 v12, 15, v10
    v_and_b32 v13, 3, v11
    v_bfe_u32 v14, v11, 2, 1
    v_mul_u32_u24 v14, 12, v14
    v_or_b32 v13, v13, v14
    v_xor_b32 v13, v13, v12
    v_lshlrev_b32 v13, 4, v13
    v_lshl_add_u32 v13, v11, 8, v13
    v_add_u32 v247, 0x10000, v13
    v_lshlrev_b32 v248, 10, v11
    v_lshl_add_u32 v248, v12, 3, v248
    """)
    A(f"s_mov_b32 s50, {SPIN}")
    A.label("L_poll")
    A("s_waitcnt vmcnt(0)")
    A("""
    v_xor_b32 v236, v236, v234
    v_xor_b32 v237, v237, v235
    v_xor_b32 v238, v238, v234
    v_xor_b32 v239, v239, v235
    v_or3_b32 v236, v236, v237, v238
    v_cmp_eq_u32 vcc, 0, v234
    v_cndmask_b32 v237, 0, 1, vcc
    v_or3_b32 v236, v236, v239, v237
    v_cmp_ne_u32 vcc, 0, v236
    s_cbranch_vccz L_poll_ok
    s_sub_u32 s50, s50, 1
    s_cmp_eq_u32 s50, 0
    s_cbranch_scc1 L_poll_ok
    """)
    issue_poll(A)
    A("s_branch L_poll")
    A.label("L_poll_ok")
    stamp(A,8)
    order = list(range(14))
    def hload(t):
        so = ["s60","s62","s63"][t >> 2] if t < 12 else "s61"
        im = (t & 3)*1024 if t < 12 else (t-12)*1024
        A(f"buffer_load_dwordx4 {v(HF+4*t,4)}, v8, s[28:31], {so} offen offset:{im} sc1")
    for t in order: hload(t)
    A("s_waitcnt lgkmcnt(0)")
    for n, t in enumerate(order):
        A(f"s_waitcnt vmcnt({13-n})")
        for nb in range(2):
            c = "0" if n == 0 else v(AC2+16*nb,16)
            A(f"v_mfma_f32_32x32x16_bf16 {v(AC2+16*nb,16)}, {v(W2F+8*t+4*nb,4)}, {v(HF+4*t,4)}, {c}")
    stamp(A,9)
    for k in range(8):
        nb, q = k >> 2, k & 3
        if k: A(f"v_xor_b32 v{224+k}, {nb*128+q*32}, v246")
    A("v_mov_b32 v224, v246")
    A("s_nop 7")
    A("s_nop 3")
    for k in range(8):
        nb, q = k >> 2, k & 3
        A(f"ds_write_b128 v{224+k}, {v(AC2+16*nb+4*q,4)}")
    A("""
    s_lshl_b32 s58, s44, 15
    s_lshl_b32 s59, s45, 7
    s_add_u32 s58, s58, s59
    s_mov_b32 s20, s12
    s_mov_b32 s21, s13
    s_mov_b32 s22, 0x100000
    s_mov_b32 s23, 0x20000
    s_waitcnt lgkmcnt(0)
    s_barrier
    """)
    for sidx in range(8):
        A(f"ds_read_b128 {v(64+4*sidx,4)}, v247 offset:{sidx*8192}")
    for lvl, pairs in enumerate([[(0,1),(2,3),(4,5),(6,7)], [(0,2),(4,6)], [(0,4)]]):
        for (a_, b_) in pairs:
            A(f"s_waitcnt lgkmcnt({max(0, 7-b_) if lvl == 0 else 0})")
            for d in range(4):
                A(f"v_add_f32 v{64+4*a_+d}, v{64+4*a_+d}, v{64+4*b_+d}")
    A("v_cvt_pk_bf16_f32 v96, v64, v65")
    A("v_cvt_pk_bf16_f32 v97, v66, v67")
    A("buffer_store_dwordx2 v[96:97], v248, s[20:23], s58 offen")
    stamp_out(A)
    A.label("L_done")
    A("s_endpgm")
    return A

def w2_reads(A, t, p, q):
    slot = P_SLOT[p]
    off = slot*32768 + q*2048
    base = 240 + 2*(off >> 16)
    off &= 0xffff
    for nb in range(2):
        r = W2F + 8*t + 4*nb
        A(f"ds_read_b64_tr_b16 {v(r,2)}, v{base+nb} offset:{off}")
        A(f"ds_read_b64_tr_b16 {v(r+2,2)}, v{base+nb} offset:{off+1024}")

def gen_poll_addr(A, is_c):
    b4 = 16 if is_c else 0
    b2 = 14 if is_c else 12
    A(f"""
    v_and_b32 v11, 3, v10
    v_lshlrev_b32 v12, 2, v11
    s_add_u32 s58, s46, {b4}
    v_add_u32 v12, s58, v12
    s_lshr_b32 s58, s46, 1
    s_add_u32 s58, s58, {b2}
    v_mov_b32 v13, s58
    v_cmp_eq_u32 vcc, 3, v11
    v_cndmask_b32 v12, v12, v13, vcc
    s_lshr_b32 s58, s44, 1
    s_mul_i32 s58, s58, 28
    v_add_u32 v12, s58, v12
    v_lshlrev_b32 v233, 7, v12
    v_add_u32 v233, {FLAG_OFF}, v233
    v_mov_b32 v232, 0
    """)
def issue_poll(A):
    A("buffer_load_dwordx2 v[234:235], v232, s[24:27], 0 offen sc1")
    A("buffer_load_dwordx4 v[236:239], v233, s[28:31], 0 offen sc1")

def main(out):
    A = Asm()
    A.raw(HEADER_COMMENT.rstrip())
    A.raw("; @launch grid=(256,1,1) block=(512,1,1) lds=163840")
    A.raw('.amdgcn_target "amdgcn-amd-amdhsa--gfx950"')
    A.raw(".text")
    B = gen()
    A.raw(B.text())
    A.raw('.section .rodata,"a"')
    A.raw(kernel_desc(K, 256, 100, 256))
    open(out, "w").write(A.text())

main(sys.argv[1])
```
